```python
import torch

def _softmax(x, axis=-1):
    return torch.softmax(x, dim=axis)
def _gelu(x):
    return torch.nn.functional.gelu(x, approximate="tanh")
def _silu(x):
    return torch.nn.functional.silu(x)
def _sigmoid(x):
    return torch.sigmoid(x)
def _layernorm(x, axis=-1, eps=1e-5):
    m = x.mean(dim=axis, keepdim=True)
    v = x.var(dim=axis, keepdim=True, unbiased=False)
    return (x - m) / torch.sqrt(v + eps)
def _scatter_add(tgt, idx, src, axis=0):
    return tgt.clone().index_add_(axis, idx, src)
def _segment_sum(src, seg, n):
    out = torch.zeros((n,) + src.shape[1:], dtype=src.dtype)
    return out.index_add_(0, seg, src)
def _pad(x, pw):
    flat = tuple(v for pair in reversed(pw) for v in pair)
    return torch.nn.functional.pad(x, flat)

kernel_name = 'sequential_preLN__gqa_block_cached__mixer_token_mlp__decode'

def setup_inputs():

    _w = (lambda a: (lambda t: t.to(torch.bfloat16) if t.is_floating_point() else t)(torch.as_tensor(a)))
    def _A_setup():
        B, Sq, D = 2, 1, 1024
        Hq, Hkv, Sk, Dh = 32, 4, 32768, 128
        assert Hq % Hkv == 0, (Hq, Hkv)
        return {
            "x": _w((lambda *s: torch.randn(*s, dtype=torch.bfloat16) * 0.05)(B, Sq, D)),
            "k_cache": _w((lambda *s: torch.randn(*s, dtype=torch.bfloat16) * 3.2)(B, Hkv, Sk, Dh)),
            "v_cache": _w((lambda *s: torch.randn(*s, dtype=torch.bfloat16) * 0.8)(B, Hkv, Sk, Dh)),
            "wq": _w((lambda *s: torch.randn(*s, dtype=torch.bfloat16) * 3.2)(D, Hq * Dh) * (D ** -0.5)),
            "wo": _w((lambda *s: torch.randn(*s, dtype=torch.bfloat16) * 0.8)(Hq * Dh, D) * ((Hq * Dh) ** -0.5)),
        }
    _A_in = _A_setup()

    def _B_setup():
        B, S, D, F = 2, 1, 1024, 3584
        return {
            "x": _w((lambda *s: torch.randn(*s, dtype=torch.bfloat16) * 0.05)(B, S, D)),
            "w1": _w((lambda *s: torch.randn(*s, dtype=torch.bfloat16) * 1.6)(S, F) * (S ** -0.5)),
            "b1": _w((lambda *s: torch.randn(*s, dtype=torch.bfloat16) * 1.6)(F) * 0.02),
            "w2": _w((lambda *s: torch.randn(*s, dtype=torch.bfloat16) * 1.6)(F, S) * (F ** -0.5)),
            "b2": _w((lambda *s: torch.randn(*s, dtype=torch.bfloat16) * 0.8)(S) * 0.02),
        }
    _B_in = _B_setup()

    return {
        "A_x": _A_in["x"],
        "A_k_cache": _A_in["k_cache"],
        "A_v_cache": _A_in["v_cache"],
        "A_wq": _A_in["wq"],
        "A_wo": _A_in["wo"],
        "B_x": _B_in["x"],
        "B_w1": _B_in["w1"],
        "B_b1": _B_in["b1"],
        "B_w2": _B_in["w2"],
        "B_b2": _B_in["b2"],
    }

def reference(A_x, A_k_cache, A_v_cache, A_wq, A_wo, B_x, B_w1, B_b1, B_w2, B_b2):
    def _A_ref(x, k_cache, v_cache, wq, wo):
        B, Sq, D = x.shape
        Hq, Dh = 32, 128
        Hkv = k_cache.shape[1]
        rep = Hq // Hkv
        q = (lambda x, *d: x.permute(*d))((x @ wq).reshape(B, Sq, Hq, Dh), 0, 2, 1, 3)
        k = (lambda x, n, axis: torch.repeat_interleave(x, n, dim=axis))(k_cache, rep, axis=1)
        v = (lambda x, n, axis: torch.repeat_interleave(x, n, dim=axis))(v_cache, rep, axis=1)
        scores = torch.einsum("bhqd,bhkd->bhqk", q, k) * (Dh ** -0.5)
        p = _softmax(scores, axis=-1)
        o = torch.einsum("bhqk,bhkd->bhqd", p, v)
        return (lambda x, *d: x.permute(*d))(o, 0, 2, 1, 3).reshape(B, Sq, Hq * Dh) @ wo

    def _B_ref(x, w1, b1, w2, b2):
        B, S, D = x.shape
        h = _layernorm(x, axis=-1)
        u = torch.einsum("bsd,sf->bdf", h, w1) + b1
        u = _gelu(u)
        y = torch.einsum("bdf,fs->bds", u, w2) + b2
        return (lambda x, *d: x.permute(*d))(y, 0, 2, 1)

    x = A_x
    h = x + _A_ref(_layernorm(x, axis=-1), A_k_cache, A_v_cache, A_wq, A_wo)
    h2 = h + _B_ref(_layernorm(h, axis=-1), B_w1, B_b1, B_w2, B_b2)
    return h2
```

```python
HEADER = open("sequential_preLN__gqa_block_cached__mixer_token_mlp__decode.s.ref").read().split("; Override launch")[0]
NAME = "sequential_preLN__gqa_block_cached__mixer_token_mlp__decode"

class A:
    def __init__(self):
        self.l = []
    def __call__(self, s=""):
        for line in s.split("\n"):
            self.l.append(line)
    def text(self):
        return "\n".join(self.l) + "\n"

def kernel_desc(label, vgpr=256, sgpr=102, accum=None, total_vgpr=None):
    acc = accum if accum is not None else ((vgpr + 3) // 4) * 4
    nf = total_vgpr if total_vgpr is not None else vgpr
    return f""".amdhsa_kernel {label}
  .amdhsa_next_free_vgpr {nf}
  .amdhsa_next_free_sgpr {sgpr}
  .amdhsa_accum_offset {acc}
  .amdhsa_group_segment_fixed_size 0
  .amdhsa_kernarg_size 104
  .amdhsa_user_sgpr_count 2
  .amdhsa_user_sgpr_kernarg_segment_ptr 1
  .amdhsa_system_sgpr_workgroup_id_x 1
.end_amdhsa_kernel
"""

def file_text(launch_lines, kernels):
    s = HEADER
    s += "; Override launch geometry by editing the next line (default: block=256,\n"
    for ll in launch_lines: s += ll + "\n"
    s += '.amdgcn_target "amdgcn-amd-amdhsa--gfx950"\n.text\n'
    for label, body, desc in kernels:
        s += f".globl {label}\n.p2align 8\n.type {label},@function\n{label}:\n{body}\n"
    s += '.section .rodata,"a"\n'
    for label, body, desc in kernels:
        s += ".p2align 6\n" + desc
    return s
```

```python
import re

TRANS = ("v_exp_f32", "v_log_f32", "v_rcp_f32", "v_rsq_f32", "v_sqrt_f32", "v_sin_f32", "v_cos_f32", "v_rcp_iflag_f32")
REG_RE = re.compile(r"^(-?\|?)([vsa])(\d+)\|?$")
RNG_RE = re.compile(r"^(-?)([vsa])\[(\d+):(\d+)\]$")

def regs_of(op):
    op = op.strip()
    m = RNG_RE.match(op)
    if m:
        return {(m.group(2), i) for i in range(int(m.group(3)), int(m.group(4)) + 1)}
    m = REG_RE.match(op)
    if m:
        return {(m.group(2), int(m.group(3)))}
    if op == "vcc": return {("s", "vcc_lo"), ("s", "vcc_hi")}
    if op == "vcc_lo": return {("s", "vcc_lo")}
    if op == "vcc_hi": return {("s", "vcc_hi")}
    if op == "exec": return {("s", "exec_lo"), ("s", "exec_hi")}
    if op == "exec_lo": return {("s", "exec_lo")}
    if op == "exec_hi": return {("s", "exec_hi")}
    if op == "m0": return {("s", "m0")}
    return set()

class Ins:
    __slots__ = ("text", "mn", "ops", "mods", "cls", "defs", "uses", "dpp", "trans", "mfma", "C", "AB", "wide_store", "lanesel", "states")
    def __init__(self, text):
        self.text = text
        t = text.split(";")[0].strip()
        parts = t.split(None, 1)
        self.mn = mn = parts[0]
        rest = parts[1] if len(parts) > 1 else ""
        ops = []; depth = 0; cur = ""
        for ch in rest:
            if ch == "[": depth += 1
            if ch == "]": depth -= 1
            if ch == "," and depth == 0:
                ops.append(cur.strip()); cur = ""
            else: cur += ch
        if cur.strip(): ops.append(cur.strip())
        mods = ""
        if ops:
            last = ops[-1].split(None, 1)
            ops[-1] = last[0]
            mods = last[1] if len(last) > 1 else ""
        self.ops = ops; self.mods = mods
        self.dpp = any(k in mods for k in ("quad_perm", "row_", "wave_", "bank_mask")) and mn.startswith("v_")
        self.trans = any(mn.startswith(x) for x in TRANS)
        self.mfma = mn.startswith("v_mfma")
        self.C = set(); self.AB = set(); self.wide_store = set(); self.lanesel = set()
        self.states = 1
        R = [regs_of(o) for o in ops]
        U = lambda idx: set().union(*[R[i] for i in idx if i < len(R)]) if idx else set()
        n = len(ops)
        if mn == "s_nop":
            self.cls = "nop"; self.defs = set(); self.uses = set(); self.states = int(ops[0], 0) + 1
        elif mn.startswith("v_"):
            self.cls = "valu"
            if self.mfma:
                self.defs = R[0]; self.AB = R[1] | R[2]; self.C = R[3]; self.uses = self.AB | self.C
            elif mn.startswith("v_cmpx"):
                self.defs = {("s", "exec_lo"), ("s", "exec_hi")} | R[0]; self.uses = U(range(1, n))
            elif mn.startswith("v_permlane") :
                self.defs = R[0] | R[1]; self.uses = R[0] | R[1]
            elif mn.startswith("v_readlane") or mn.startswith("v_writelane"):
                self.defs = R[0]; self.uses = U(range(1, n)); self.lanesel = R[2]
                if mn.startswith("v_writelane"): self.uses |= R[0]
            elif mn.startswith("v_fmac") or mn.startswith("v_dot2c") or mn.startswith("v_pk_fmac"):
                self.defs = R[0]; self.uses = U(range(0, n))
            elif mn.startswith("v_add_co") or mn.startswith("v_sub_co") or mn.startswith("v_addc_co"):
                self.defs = R[0] | R[1]; self.uses = U(range(2, n))
            else:
                self.defs = R[0]; self.uses = U(range(1, n))
                if self.dpp and "bound_ctrl" not in mods:
                    self.uses |= R[0]
        elif mn.startswith("buffer_load"):
            self.cls = "vmem"
            if "lds" in mods.split():
                self.defs = set(); self.uses = U(range(0, n)) | {("s", "m0")}
            else:
                self.defs = R[0]; self.uses = U(range(1, n))
                if "d16" in mn: self.uses |= R[0]
        elif mn.startswith("buffer_store") or mn.startswith("buffer_atomic"):
            self.cls = "vmem"; self.defs = set(); self.uses = U(range(0, n))
            if mn.endswith("x3") or mn.endswith("x4"): self.wide_store = R[0]
        elif mn.startswith("ds_read") or mn.startswith("ds_bpermute") or mn.startswith("ds_swizzle"):
            self.cls = "ds"; self.defs = R[0]; self.uses = U(range(1, n))
            if "d16" in mn: self.uses |= R[0]
        elif mn.startswith("ds_"):
            self.cls = "ds"; self.defs = set(); self.uses = U(range(0, n))
        elif mn.startswith("s_"):
            self.cls = "salu"
            if mn.startswith(("s_cmp", "s_waitcnt", "s_barrier", "s_cbranch", "s_branch", "s_endpgm", "s_sleep", "s_setprio", "s_bitcmp")):
                self.defs = set(); self.uses = U(range(0, n))
            elif mn.startswith("s_and_saveexec") or mn.startswith("s_or_saveexec"):
                self.defs = R[0] | {("s", "exec_lo"), ("s", "exec_hi")}; self.uses = U(range(1, n))
            else:
                self.defs = R[0] if R else set(); self.uses = U(range(1, n))
        else:
            raise ValueError("unknown instr: " + text)

def vg(s): return {r for r in s if r[0] in ("v", "a")}
def sg(s): return {r for r in s if r[0] == "s"}

def hazard(P, C):
    need = 0
    if P.cls == "valu" and not P.mfma:
        Wv = vg(P.defs); Ws = sg(P.defs)
        if C.cls == "valu":
            if Wv & vg(C.uses):
                if C.mn.startswith(("v_readlane", "v_readfirstlane")): need = max(need, 1)
                if C.dpp: need = max(need, 2)
                if C.mn.startswith("v_permlane"): need = max(need, 2)
                if C.mfma: need = max(need, 2)
                if P.trans and not C.trans: need = max(need, 1)
                if P.mn.startswith("v_dot") and C.mn != P.mn: need = max(need, 3)
                if P.mn.startswith("v_dot") and C.mn == P.mn: need = max(need, 3)
            if P.mn.startswith("v_dot") and (Wv & vg(C.defs)) and C.mn != P.mn: need = max(need, 3)
            if Ws & sg(C.uses):
                need = max(need, 2)
                if Ws & C.lanesel: need = max(need, 4)
            if ("s", "exec_lo") in Ws:
                if C.dpp: need = max(need, 5)
                if C.mfma or C.mn.startswith(("v_readlane", "v_readfirstlane", "v_writelane", "v_permlane")): need = max(need, 4)
        elif C.cls in ("vmem", "ds"):
            if Ws & sg(C.uses): need = max(need, 5)
            if (P.trans or P.mn.startswith("v_dot")) and (Wv & vg(C.uses)): need = max(need, 3 if P.mn.startswith("v_dot") else 1)
    if P.mfma:
        D = P.defs
        if C.mfma:
            if D & C.AB: need = max(need, 8)
            if D & C.C:
                if not (C.C == D): need = max(need, 6)
            elif D & C.defs: need = max(need, 8)
        elif C.cls in ("valu", "vmem", "ds"):
            if D & (C.uses | C.defs): need = max(need, 8)
        if C.cls == "valu" and not C.mfma:
            if P.C & C.defs: need = max(need, 3)
    if P.wide_store:
        if P.wide_store & C.defs:
            need = max(need, 2 if C.cls == "valu" else 1)
    if P.cls == "salu" and ("s", "m0") in P.defs and ("s", "m0") in C.uses and C.cls in ("vmem", "ds"):
        need = max(need, 1)
    return need

WINDOW = 10

class Em:
    def __init__(self):
        self.lines = []
        self.hist = []
        self.snap = {}
        self.seen_labels = set()
        self.vm = []
        self.vm_done = 0
        self.optional = 0
        self.nops = 0
        self.count = 0
    def _age(self, k):
        for h in self.hist: h[1] += k
        self.hist = [h for h in self.hist if h[1] < WINDOW]
    def raw(self, s):
        self.lines.append(s)
    def comment(self, s):
        self.lines.append("    ; " + s)
    def ins(self, text, tag=None):
        I = Ins(text)
        need = 0
        for P, d in self.hist:
            need = max(need, hazard(P, I) - d)
        if need > 0:
            self.lines.append(f"    s_nop {need-1}")
            self.nops += need
            self._age(need)
        self.lines.append("    " + text)
        self.count += 1
        self._age(I.states)
        self.hist.append([I, 0])
        if I.cls == "vmem" and not self.optional:
            self.vm.append(tag)
        if I.mn.startswith(("s_cbranch", "s_branch")):
            lab = I.ops[0]
            if lab in self.seen_labels:
                pass
            else:
                self.snap.setdefault(lab, []).append([[p, d] for p, d in self.hist])
            if I.mn == "s_branch":
                self.hist = []
        return I
    def __call__(self, text, tag=None):
        for line in text.split("\n"):
            l = line.strip()
            if not l: continue
            if l.startswith(";"):
                self.lines.append("    " + l); continue
            if l.endswith(":"):
                self.label(l[:-1]); continue
            self.ins(l, tag)
    def label(self, name):
        self.lines.append(name + ":")
        self.seen_labels.add(name)
        for sn in self.snap.get(name, []):
            for p, d in sn:
                found = False
                for h in self.hist:
                    if h[0] is p:
                        h[1] = min(h[1], d); found = True
                if not found: self.hist.append([p, d])
    def flush(self):
        need = 0
        for P, d in self.hist:
            w = 0
            if P.mfma: w = 8
            elif P.cls == "valu": w = 5 if sg(P.defs) else 2
            elif P.wide_store: w = 2
            need = max(need, w - d)
        if need > 0:
            self.lines.append(f"    s_nop {need-1}")
            self._age(need)
    def vm_index(self, tag):
        idx = [i for i, t in enumerate(self.vm) if t == tag]
        assert idx, f"tag {tag} not issued"
        return idx[-1]
    def wait_vm(self, tag, extra=""):
        i = self.vm_index(tag)
        if i < self.vm_done and not extra:
            return
        n = len(self.vm) - 1 - i
        n = min(n, 63)
        self.ins(f"s_waitcnt vmcnt({n}){' ' + extra if extra else ''}")
        self.vm_done = max(self.vm_done, len(self.vm) - n)
    def wait_vm_all(self):
        self.ins("s_waitcnt vmcnt(0)")
        self.vm_done = len(self.vm)
    def pace(self, depth):
        n = depth - 1
        if len(self.vm) - self.vm_done > n:
            self.ins(f"s_waitcnt vmcnt({n})")
            self.vm_done = len(self.vm) - n
    def done(self, tag):
        return self.vm_index(tag) < self.vm_done
    def text(self):
        return "\n".join(self.lines) + "\n"
```

```python
import sys, struct
sys.path.insert(0, "dev")
from asmlib import *
from emit import Em

def f2u(x): return struct.unpack("<I", struct.pack("<f", x))[0]
LOG2E = 1.4426950408889634
K0 = -2.0 * (2.0 / 3.141592653589793) ** 0.5 * LOG2E
K1 = K0 * 0.044715
SCALE = f2u(128 ** -0.5)

EPOCH = 0
QOFF = 0x1000
IN1 = 0x100000
IN2 = 0x400000
ST = 0x600000
DBG = 0x800000
WS_SIZE = 0x1000000
QPART = 0; LDSQ = 1024; MX = 3328; LS = 3584; OL = 3840; TL = 3968; HRED = 4096; GRED = 4608; ORED = 8192
LDS_BYTES = ORED + 8 * 4224
sW = "s3"
X_SRD = "s[32:35]"; K_SRD = "s[36:39]"; V_SRD = "s[40:43]"; WQ_SRD = "s[44:47]"; WO_SRD = "s[48:51]"
W1_SRD = "s[52:55]"; B1_SRD = "s[56:59]"; W2_SRD = "s[60:63]"; WS_SRD = "s[64:67]"; OUT_SRD = "s[68:71]"; B2_SRD = "s[72:75]"
sE = "s76"; sB = "s77"; sKVH = "s78"; sSPLIT = "s79"; sKs = "s80"; sVs = "s81"
sT = ["s84", "s85", "s86", "s87"]
sCB = "s88"; sPE = "s89"; sPO = "s90"; sMASK = "s91"; sHI = "s92"; sCNT = "s93"; sLOG = "s94"; sTMP = "s82"; sTMP2 = "s83"
sQG = "s95"; sP1 = "s96"; sC1 = "s97"; sP2 = "s98"; sC2 = "s99"
SPIN_MAX = 20000

def vr(a, n=1): return f"v{a}" if n == 1 else f"v[{a}:{a+n-1}]"

def gen(D=10, NQ=20, stop_after=None, stamps=False, kfirst=False):
    e = Em()
    label = NAME + "_kernel"
    nstamp = [0]; stamp_names = []
    def stamp(name):
        if not stamps: return
        if stamps is not True and name not in stamps: return
        if stamps is True and name in ("start", "tgot", "pdone"): return
        i = nstamp[0]; nstamp[0] += 1; stamp_names.append(name)
        assert i < 13, name
        e(f"s_memrealtime s[{4+2*i}:{5+2*i}]")
    def rnd_pair(a, b, t):
        e(f"v_cvt_pk_bf16_f32 v{t}, v{a}, v{b}\nv_lshlrev_b32 v{a}, 16, v{t}\nv_and_b32 v{b}, {sHI}, v{t}")
    def rnd1(a, t):
        e(f"v_cvt_pk_bf16_f32 v{t}, v{a}, v{a}\nv_and_b32 v{a}, {sHI}, v{t}")
    def finish():
        e("s_waitcnt vmcnt(0) lgkmcnt(0)")
        if stamps:
            e(f"""
            s_lshl_b32 {sTMP}, s2, 3
            s_add_u32 {sTMP}, {sTMP}, {sW}
            s_lshl_b32 {sTMP}, {sTMP}, 7
            s_add_u32 {sTMP}, {sTMP}, {DBG}
            v_mov_b32 v4, 0
            s_mov_b64 exec, 1
            """)
            e(f"v_mov_b32 v5, s100\nbuffer_store_dword v5, v4, {WS_SRD}, {sTMP} offen")
            for i in range(nstamp[0]):
                e(f"v_mov_b32 v5, s{4+2*i}\nbuffer_store_dword v5, v4, {WS_SRD}, {sTMP} offen offset:{4*i+4}")
            e("s_waitcnt vmcnt(0)")
        e("s_branch L_end")

    if stamps: e("s_memrealtime s[100:101]")
    e(f"""
    s_load_dwordx16 s[4:19], s[0:1], 0
    s_load_dwordx8 s[20:27], s[0:1], 64
    s_load_dwordx2 s[28:29], s[0:1], 96
    s_cmp_ge_u32 s2, 256
    s_cbranch_scc1 L_end
    v_lshrrev_b32 v4, 6, v0
    v_and_b32 v1, 63, v0
    v_readfirstlane_b32 {sW}, v4
    v_and_b32 v5, 3, v1
    v_lshlrev_b32 v5, 2, v5
    v_bfe_u32 v6, v1, 2, 2
    v_add_u32 v5, v5, v6
    v_lshlrev_b32 v2, 8, v5
    v_and_b32 v6, 0x30, v1
    v_or_b32 v2, v2, v6
    v_lshlrev_b32 v3, 4, v1
    s_and_b32 s30, s2, 7
    s_lshr_b32 {sSPLIT}, s2, 3
    s_lshr_b32 {sB}, s30, 2
    s_and_b32 {sKVH}, s30, 3
    s_lshl_b32 s31, s30, 23
    s_lshl_b32 {sTMP}, {sSPLIT}, 18
    s_add_u32 s31, s31, {sTMP}
    s_lshl_b32 {sTMP}, {sW}, 15
    s_add_u32 s31, s31, {sTMP}
    s_lshl_b32 {sCB}, s30, 5
    s_add_u32 {sCB}, {sCB}, {sSPLIT}
    s_mov_b32 {sKs}, 0
    s_mov_b32 {sVs}, 0
    v_lshlrev_b32 v7, 5, v1
    v_lshrrev_b32 v60, 1, v1
    v_lshlrev_b32 v61, 3, v60
    s_lshl_b32 {sTMP}, {sW}, 8
    v_add_u32 v61, {sTMP}, v61
    v_lshlrev_b32 v62, 15, v60
    v_and_b32 v63, 1, v1
    v_lshlrev_b32 v63, 4, v63
    v_or_b32 v62, v62, v63
    s_waitcnt lgkmcnt(0)
    s_load_dword {sE}, s[28:29], {EPOCH}
    s_add_u32 s36, s6, s31
    s_addc_u32 s37, s7, 0
    s_mov_b32 s38, 32768
    s_mov_b32 s39, 0x00020000
    s_mov_b32 s32, s4
    s_mov_b32 s33, s5
    s_mov_b32 s34, 4096
    s_mov_b32 s35, 0x00020000
    s_lshl_b32 {sTMP}, {sCB}, 5
    s_lshl_b32 {sTMP2}, {sW}, 20
    s_add_u32 {sTMP}, {sTMP}, {sTMP2}
    s_add_u32 s44, s10, {sTMP}
    s_addc_u32 s45, s11, 0
    s_mov_b32 s46, 0x100000
    s_mov_b32 s47, 0x00020000
    """)
    def kload(n):
        t, j = divmod(n, 4)
        if j == 0 and t > 0: e(f"s_add_u32 {sKs}, {sKs}, 4096")
        r = 128 + 16 * t + 4 * j
        e(f"buffer_load_dwordx4 {vr(r,4)}, v2, {K_SRD}, {sKs} offen offset:{j*64} nt", tag=("L", n))
    def vreg(u, ee):
        base = [64, 96, 128, 160][u]
        return base + 4 * ee
    def vload(n):
        m = n - 32
        u, ee = divmod(m, 8)
        if ee % 4 == 0 and m > 0: e(f"s_add_u32 {sVs}, {sVs}, 4096")
        e(f"buffer_load_dwordx4 {vr(vreg(u,ee),4)}, v3, {V_SRD}, {sVs} offen offset:{(ee%4)*1024} nt", tag=("L", n))
    nxt = [0]
    def issue(paced=True):
        n = nxt[0]
        if n >= 64: return
        if paced and n >= D: e.wait_vm(("L", n - D))
        (kload if n < 32 else vload)(n)
        nxt[0] += 1
    def xwq_loads():
        e(f"buffer_load_dwordx4 v[8:11], v7, {X_SRD}, 0 offen", tag="x")
        e(f"buffer_load_dwordx4 v[12:15], v7, {X_SRD}, 0 offen offset:16", tag="x")
        e(f"buffer_load_dwordx4 v[16:19], v7, {X_SRD}, 0 offen offset:2048", tag="x")
        e(f"buffer_load_dwordx4 v[20:23], v7, {X_SRD}, 0 offen offset:2064", tag="x")
        e(f"buffer_load_dwordx2 v[24:25], v61, {X_SRD}, 0 offen", tag="x")
        e(f"buffer_load_dwordx2 v[26:27], v61, {X_SRD}, 0 offen offset:2048", tag="x")
        for j in range(4):
            if j == 0: so = "0"
            else:
                e(f"s_mov_b32 {sTMP}, {8192*j}"); so = sTMP
            e(f"buffer_load_dwordx4 {vr(28+4*j,4)}, v62, {WQ_SRD}, {so} offen", tag="wq")
    if kfirst:
        for _ in range(D): issue(False)
        xwq_loads()
    else:
        xwq_loads()
        for _ in range(D): issue(False)
    e(f"""
    s_add_u32 s40, s8, s31
    s_addc_u32 s41, s9, 0
    s_mov_b32 s42, 32768
    s_mov_b32 s43, 0x00020000
    s_lshr_b32 {sTMP}, s2, 3
    s_lshl_b32 {sTMP}, {sTMP}, 18
    s_bfe_u32 {sTMP2}, s2, 0x20001
    s_lshl_b32 {sTMP2}, {sTMP2}, 16
    s_add_u32 {sTMP}, {sTMP}, {sTMP2}
    s_and_b32 {sTMP2}, s2, 1
    s_lshl_b32 {sTMP2}, {sTMP2}, 13
    s_add_u32 {sTMP}, {sTMP}, {sTMP2}
    s_lshl_b32 {sTMP2}, {sW}, 8
    s_add_u32 {sTMP}, {sTMP}, {sTMP2}
    s_add_u32 s48, s12, {sTMP}
    s_addc_u32 s49, s13, 0
    s_mov_b32 s50, 55552
    s_mov_b32 s51, 0x00020000
    s_mov_b32 s52, s16
    s_mov_b32 s53, s17
    s_mov_b32 s54, 7168
    s_mov_b32 s55, 0x00020000
    s_mov_b32 s56, s18
    s_mov_b32 s57, s19
    s_mov_b32 s58, 7168
    s_mov_b32 s59, 0x00020000
    s_mov_b32 s60, s20
    s_mov_b32 s61, s21
    s_mov_b32 s62, 7168
    s_mov_b32 s63, 0x00020000
    s_mov_b32 s64, s28
    s_mov_b32 s65, s29
    s_mov_b32 s66, {WS_SIZE}
    s_mov_b32 s67, 0x00020000
    s_mov_b32 s68, s24
    s_mov_b32 s69, s25
    s_mov_b32 s70, 4096
    s_mov_b32 s71, 0x00020000
    s_mov_b32 s72, s22
    s_mov_b32 s73, s23
    s_mov_b32 s74, 2
    s_mov_b32 s75, 0x00020000
    s_mov_b32 {sPE}, 0x05040100
    s_mov_b32 {sPO}, 0x07060302
    s_mov_b32 {sMASK}, 0xfffffc00
    s_mov_b32 {sHI}, 0xffff0000
    s_mov_b32 {sLOG}, {hex(f2u(LOG2E))}
    s_lshl_b32 {sQG}, {sB}, 14
    s_lshl_b32 {sTMP}, {sKVH}, 12
    s_add_u32 {sQG}, {sQG}, {sTMP}
    s_lshl_b32 {sTMP}, {sW}, 9
    s_add_u32 {sQG}, {sQG}, {sTMP}
    s_add_u32 {sQG}, {sQG}, {QOFF}
    s_lshl_b32 {sP1}, {sKVH}, 19
    s_lshl_b32 {sTMP}, {sB}, 12
    s_add_u32 {sP1}, {sP1}, {sTMP}
    s_lshl_b32 {sTMP}, {sSPLIT}, 7
    s_add_u32 {sP1}, {sP1}, {sTMP}
    s_add_u32 {sP1}, {sP1}, {IN1}
    s_lshl_b32 {sC1}, s2, 13
    s_lshl_b32 {sTMP}, {sW}, 12
    s_add_u32 {sC2}, {sC1}, {IN2}
    s_add_u32 {sC1}, {sC1}, {sTMP}
    s_add_u32 {sC1}, {sC1}, {IN1}
    s_lshl_b32 {sP2}, {sW}, 17
    s_lshl_b32 {sTMP}, s2, 5
    s_add_u32 {sP2}, {sP2}, {sTMP}
    s_add_u32 {sP2}, {sP2}, {IN2}
    s_waitcnt lgkmcnt(0)
    s_add_u32 {sE}, {sE}, 0x9e3779b9
    """)
    for k in range(4):
        e(f"s_add_u32 {sT[k]}, {sE}, {341*k}\ns_and_b32 {sT[k]}, {sT[k]}, 0x3ff")
    if stamps:
        for i in range(13): e(f"s_mov_b32 s{4+2*i}, 0")
    stamp("start")

    e.wait_vm("x")
    for k in range(8):
        for b in range(2):
            src = 8 + 8 * b + k; t = 72 + 4 * b + 2 * (k % 2)
            e(f"v_lshlrev_b32 v{t}, 16, v{src}\nv_and_b32 v{t+1}, {sHI}, v{src}")
            if k == 0:
                e(f"v_pk_mul_f32 {vr(68+2*b,2)}, {vr(t,2)}, {vr(t,2)}")
                e(f"v_mov_b32 v{64+2*b}, v{t}\nv_mov_b32 v{65+2*b}, v{t+1}")
            else:
                e(f"v_pk_add_f32 {vr(64+2*b,2)}, {vr(64+2*b,2)}, {vr(t,2)}")
                e(f"v_pk_fma_f32 {vr(68+2*b,2)}, {vr(t,2)}, {vr(t,2)}, {vr(68+2*b,2)}")
    e("""
    v_add_f32 v64, v64, v65
    v_add_f32 v66, v66, v67
    v_add_f32 v68, v68, v69
    v_add_f32 v70, v70, v71
    v_permlane32_swap_b32 v64, v66
    v_permlane32_swap_b32 v68, v70
    v_add_f32 v64, v64, v66
    v_add_f32 v68, v68, v70
    v_permlane16_swap_b32 v64, v68
    v_add_f32 v64, v64, v68
    """)
    for n in (8, 4, 2, 1):
        e(f"v_add_f32_dpp v64, v64, v64 row_ror:{n} row_mask:0xf bank_mask:0xf")
    issue(False)
    e("""
    v_readlane_b32 s30, v64, 0
    v_readlane_b32 s31, v64, 16
    v_readlane_b32 s82, v64, 32
    v_readlane_b32 s83, v64, 48
    v_mov_b32 v72, 0x3a800000
    v_mul_f32 v64, s30, v72
    v_mul_f32 v65, s82, v72
    v_mul_f32 v66, s31, v72
    v_mul_f32 v67, s83, v72
    v_fma_f32 v66, -v64, v64, v66
    v_fma_f32 v67, -v65, v65, v67
    """)
    rnd_pair(64, 65, 72); rnd_pair(66, 67, 73)
    e("v_add_f32 v66, 0x3727c5ac, v66\nv_add_f32 v67, 0x3727c5ac, v67")
    rnd_pair(66, 67, 72)
    e("v_sqrt_f32 v66, v66\nv_sqrt_f32 v67, v67")
    rnd_pair(66, 67, 72)
    e("v_rcp_f32 v68, v66\nv_rcp_f32 v69, v67")
    for b in range(2):
        for h in range(2):
            src = 24 + 2 * b + h; d = 80 + 4 * b + 2 * h
            e(f"v_lshlrev_b32 v{d}, 16, v{src}\nv_and_b32 v{d+1}, {sHI}, v{src}")
            e(f"v_sub_f32 v{d}, v{d}, v{64+b}\nv_sub_f32 v{d+1}, v{d+1}, v{64+b}")
            rnd_pair(d, d + 1, 72 + h)
    for b in range(2):
        for j in range(4):
            d = 80 + 4 * b + j; q = 72 + j
            e(f"v_mul_f32 v{q}, v{d}, v{68+b}")
        for j in range(4):
            d = 80 + 4 * b + j; q = 72 + j
            e(f"v_fma_f32 v{d}, -v{q}, v{66+b}, v{d}")
        for j in range(4):
            d = 80 + 4 * b + j; q = 72 + j
            e(f"v_fma_f32 v{d}, v{d}, v{68+b}, v{q}")
        rnd_pair(80 + 4 * b, 81 + 4 * b, 76); rnd_pair(82 + 4 * b, 83 + 4 * b, 77)
    issue(False)
    e.wait_vm("wq")
    for j in range(4):
        for k in range(4):
            src = 28 + 4 * j + k; t = 72 + 2 * (k % 2) + 4 * (j % 2)
            e(f"v_lshlrev_b32 v{t}, 16, v{src}\nv_and_b32 v{t+1}, {sHI}, v{src}")
            for b in range(2):
                acc = 44 + 8 * b + 2 * k
                xp = 80 + 4 * b + 2 * (j // 2)
                sel = "op_sel:[0,1,0] op_sel_hi:[1,1,1]" if j % 2 else "op_sel_hi:[1,0,1]"
                sel2 = "op_sel:[0,1] op_sel_hi:[1,1]" if j % 2 else "op_sel_hi:[1,0]"
                if j == 0: e(f"v_pk_mul_f32 {vr(acc,2)}, {vr(t,2)}, {vr(xp,2)} {sel2}")
                else: e(f"v_pk_fma_f32 {vr(acc,2)}, {vr(t,2)}, {vr(xp,2)}, {vr(acc,2)} {sel}")
    issue(False)
    for c in range(8): e(f"v_permlane32_swap_b32 v{44+c}, v{52+c}")
    for c in range(8): e(f"v_add_f32 v{44+c}, v{44+c}, v{52+c}")
    for c in range(4): e(f"v_permlane16_swap_b32 v{44+c}, v{48+c}")
    for c in range(4): e(f"v_add_f32 v{44+c}, v{44+c}, v{48+c}")
    for n in (8, 4, 2):
        for c in range(4): e(f"v_add_f32_dpp v{44+c}, v{44+c}, v{44+c} row_ror:{n} row_mask:0xf bank_mask:0xf")
    e(f"""
    v_lshrrev_b32 v4, 5, v1
    v_lshlrev_b32 v4, 6, v4
    v_and_b32 v5, 1, v1
    v_lshlrev_b32 v5, 5, v5
    v_and_b32 v6, 16, v1
    v_or3_b32 v4, v4, v5, v6
    s_lshl_b32 {sTMP}, {sW}, 7
    v_add_u32 v4, {sTMP}, v4
    s_mov_b32 exec_lo, 0x00030003
    s_mov_b32 exec_hi, 0x00030003
    ds_write_b128 v4, v[44:47] offset:{QPART}
    s_mov_b64 exec, -1
    s_waitcnt lgkmcnt(0)
    s_barrier
    """)
    issue(False)
    e(f"s_cmp_lg_u32 {sW}, 0\ns_cbranch_scc1 L_qpub_done")
    e.optional += 1
    e(f"""
    v_lshrrev_b32 v4, 3, v1
    v_lshlrev_b32 v4, 6, v4
    v_and_b32 v5, 7, v1
    v_lshlrev_b32 v5, 3, v5
    v_add_u32 v4, v4, v5
    s_mov_b64 exec, 0xffff
    """)
    for wv in range(8): e(f"ds_read_b64 {vr(44+2*wv,2)}, v4 offset:{QPART+128*wv}")
    e(f"""
    v_lshrrev_b32 v6, 3, v1
    v_lshlrev_b32 v6, 14, v6
    v_add_u32 v6, v6, v5
    s_lshl_b32 {sTMP}, {sCB}, 6
    s_add_u32 {sTMP}, {sTMP}, {QOFF}
    s_waitcnt lgkmcnt(0)
    v_pk_add_f32 v[44:45], v[44:45], v[46:47]
    v_pk_add_f32 v[48:49], v[48:49], v[50:51]
    v_pk_add_f32 v[52:53], v[52:53], v[54:55]
    v_pk_add_f32 v[56:57], v[56:57], v[58:59]
    v_pk_add_f32 v[44:45], v[44:45], v[48:49]
    v_pk_add_f32 v[52:53], v[52:53], v[56:57]
    v_pk_add_f32 v[44:45], v[44:45], v[52:53]
    v_cvt_pk_bf16_f32 v44, v44, v45
    v_mov_b32 v45, {sE}
    buffer_store_dwordx2 v[44:45], v6, {WS_SRD}, {sTMP} offen sc1
    s_mov_b64 exec, -1
    """)
    e.optional -= 1
    e("L_qpub_done:")
    stamp("qpub")
    if stop_after == "q":
        finish(); return wrap(e, label), stamp_names

    qk_done = [0]
    state = {"qready": False}
    def qk_tiles():
        while state["qready"] and qk_done[0] < 8 and e.done(("L", 4 * qk_done[0] + 3)):
            t = qk_done[0]
            for j in range(4):
                c = "0" if j == 0 else vr(8 + 4 * t, 4)
                e(f"v_mfma_f32_16x16x32_bf16 {vr(8+4*t,4)}, {vr(128+16*t+4*j,4)}, {vr(40+4*j,4)}, {c}")
            qk_done[0] += 1
    while nxt[0] < NQ: issue()
    e(f"v_lshlrev_b32 v4, 3, v1")
    e(f"buffer_load_dwordx2 v[6:7], v4, {WS_SRD}, {sQG} offen sc1", tag="qg")
    for _ in range(min(D, 4)): issue()
    e.wait_vm("qg")
    e(f"""
    v_cmp_ne_u32 vcc, {sE}, v7
    s_cbranch_vccnz L_qretry
L_qok:
    v_lshlrev_b32 v5, 2, v1
    s_mul_i32 {sTMP}, {sW}, 272
    v_add_u32 v5, {sTMP}, v5
    ds_write_b32 v5, v6 offset:{LDSQ}
    v_and_b32 v5, 7, v1
    v_mul_u32_u24 v5, 272, v5
    v_and_b32 v6, 0x30, v1
    v_add_u32 v5, v5, v6
    s_waitcnt lgkmcnt(0)
    s_barrier
    """)
    for j in range(4): e(f"ds_read_b128 {vr(40+4*j,4)}, v5 offset:{LDSQ+64*j}")
    issue()
    e("s_waitcnt lgkmcnt(0)")
    state["qready"] = True
    stamp("qgot")
    while nxt[0] < 32 + D - 1 and qk_done[0] < 8:
        qk_tiles(); issue()
    e.wait_vm(("L", 31))
    qk_tiles()
    assert qk_done[0] == 8
    stamp("kdone")
    e(f"v_mov_b32 v56, {hex(SCALE)}\nv_mov_b32 v57, {hex(SCALE)}")
    for t in range(8):
        for h in range(2):
            a = 8 + 4 * t + 2 * h; tm = 58 + h
            e(f"v_cvt_pk_bf16_f32 v{tm}, v{a}, v{a+1}\nv_lshlrev_b32 v{a}, 16, v{tm}\nv_and_b32 v{a+1}, {sHI}, v{tm}")
            e(f"v_pk_mul_f32 {vr(a,2)}, {vr(a,2)}, v[56:57]")
            e(f"v_cvt_pk_bf16_f32 v{tm}, v{a}, v{a+1}\nv_lshlrev_b32 v{a}, 16, v{tm}\nv_and_b32 v{a+1}, {sHI}, v{tm}")
        if t in (3,): issue()
    e("v_max3_f32 v60, v8, v9, v10\nv_max3_f32 v61, v24, v25, v26")
    rest0 = list(range(11, 24)); rest1 = list(range(27, 40))
    for i in range(0, 12, 2):
        e(f"v_max3_f32 v60, v60, v{rest0[i]}, v{rest0[i+1]}\nv_max3_f32 v61, v61, v{rest1[i]}, v{rest1[i+1]}")
    e(f"v_max3_f32 v60, v60, v{rest0[12]}, v{rest1[12]}\nv_max_f32 v60, v60, v61")
    e(f"""
    v_mov_b32 v61, v60
    v_permlane16_swap_b32 v60, v61
    v_max_f32 v60, v60, v61
    v_mov_b32 v61, v60
    v_permlane32_swap_b32 v60, v61
    v_max_f32 v60, v60, v61
    v_lshlrev_b32 v4, 5, v1
    s_lshl_b32 {sTMP}, {sW}, 2
    v_add_u32 v4, {sTMP}, v4
    s_mov_b64 exec, 0xff
    ds_write_b32 v4, v60 offset:{MX}
    s_mov_b64 exec, -1
    v_and_b32 v5, 7, v1
    v_lshlrev_b32 v5, 5, v5
    s_waitcnt lgkmcnt(0)
    s_barrier
    ds_read_b128 v[56:59], v5 offset:{MX}
    ds_read_b128 v[60:63], v5 offset:{MX+16}
    """)
    issue()
    e(f"v_lshlrev_b32 v6, 1, v0")
    e(f"s_mov_b32 {sCNT}, 4096")
    for f in range(7):
        e(f"buffer_load_short_d16_hi v{224+2*f}, v6, {W1_SRD}, {'0' if f < 4 else sCNT} offen offset:{1024*(f%4)}", tag="gw")
    for f in range(7):
        e(f"buffer_load_short_d16_hi v{225+2*f}, v6, {W2_SRD}, {'0' if f < 4 else sCNT} offen offset:{1024*(f%4)}", tag="gw")
    for f in range(7):
        e(f"buffer_load_short_d16_hi v{238+2*f}, v6, {B1_SRD}, {'0' if f < 4 else sCNT} offen offset:{1024*(f%4)}", tag="gw")
    e(f"""
    v_and_b32 v7, 7, v1
    v_lshlrev_b32 v7, 1, v7
    s_lshl_b32 {sTMP}, s2, 4
    buffer_load_short_d16_hi v252, v7, {X_SRD}, {sTMP} offen
    v_mov_b32 v7, 0
    buffer_load_short_d16_hi v253, v7, {B2_SRD}, 0 offen
    """, tag="gw")
    e(f"""
    s_waitcnt lgkmcnt(0)
    v_max3_f32 v56, v56, v57, v58
    v_max3_f32 v60, v60, v61, v62
    v_max3_f32 v56, v56, v59, v63
    v_max_f32 v56, v56, v60
    v_mul_f32 v58, {sLOG}, v56
    v_sub_f32 v58, 0, v58
    v_mov_b32 v60, {sLOG}
    v_mov_b32 v61, {sLOG}
    """)
    for t in range(8):
        for h in range(2):
            a = 8 + 4 * t + 2 * h
            e(f"v_pk_fma_f32 {vr(a,2)}, {vr(a,2)}, v[60:61], v[58:59] op_sel_hi:[1,1,0]")
        for h in range(2):
            a = 8 + 4 * t + 2 * h
            e(f"v_exp_f32 v{a}, v{a}\nv_exp_f32 v{a+1}, v{a+1}")
        for h in range(2):
            a = 8 + 4 * t + 2 * h
            if t == 0 and h == 0: e(f"v_mov_b32 v62, v{a}\nv_mov_b32 v63, v{a+1}")
            else: e(f"v_pk_add_f32 v[62:63], v[62:63], {vr(a,2)}")
            e(f"v_cvt_pk_bf16_f32 v{40 + 4*(t//2) + 2*(t%2) + h}, v{a}, v{a+1}")
        if t in (2, 5): issue()
    e(f"""
    v_add_f32 v62, v62, v63
    v_mov_b32 v63, v62
    v_permlane16_swap_b32 v62, v63
    v_add_f32 v62, v62, v63
    v_mov_b32 v63, v62
    v_permlane32_swap_b32 v62, v63
    v_add_f32 v62, v62, v63
    s_mov_b64 exec, 0xff
    ds_write_b32 v4, v62 offset:{LS}
    s_mov_b64 exec, -1
    """)
    stamp("pdone")
    pv_done = [0]
    def pv_block(u):
        def perms(i):
            d = 56 + 4 * (i % 2)
            s = sPO if i % 2 else sPE
            for pp in range(4):
                e(f"v_perm_b32 v{d+pp}, v{vreg(u,2*pp+1)+i//2}, v{vreg(u,2*pp)+i//2}, {s}")
        perms(0)
        for i in range(8):
            if i < 7: perms(i + 1)
            c = "0" if u == 0 else vr(8 + 4 * i, 4)
            e(f"v_mfma_f32_16x16x32_bf16 {vr(8+4*i,4)}, {vr(56+4*(i%2),4)}, {vr(40+4*u,4)}, {c}")
    def pv_blocks():
        while pv_done[0] < 3 and e.done(("L", 32 + 8 * pv_done[0] + 7)):
            pv_block(pv_done[0]); pv_done[0] += 1
    gw_pre = [False]
    def gelu_pre():
        if gw_pre[0] or not e.done("gw"): return
        gw_pre[0] = True
        for f in range(7):
            e(f"v_mul_f32 v{239+2*f}, v{238+2*f}, v{225+2*f}\nv_mul_f32 v{225+2*f}, v{224+2*f}, v{225+2*f}")
    while nxt[0] < 64:
        pv_blocks(); gelu_pre(); issue()
    e(f"""
    v_lshrrev_b32 v6, 4, v1
    v_lshlrev_b32 v6, 14, v6
    v_and_b32 v7, 15, v1
    v_lshlrev_b32 v7, 4, v7
    v_or_b32 v6, v6, v7
    s_mov_b32 {sCNT}, 4096
    """)
    for ee in range(4):
        e(f"buffer_load_dwordx4 {vr(192+4*ee,4)}, v6, {WO_SRD}, {'0' if ee < 2 else sCNT} offen offset:{2048*(ee%2)}", tag="wo")
    while pv_done[0] < 3:
        e.wait_vm(("L", 32 + 8 * pv_done[0] + 7)); pv_blocks()
    gelu_pre()
    e(f"""
    v_and_b32 v4, 15, v1
    v_mul_u32_u24 v4, 528, v4
    v_lshrrev_b32 v5, 4, v1
    v_lshlrev_b32 v5, 7, v5
    v_add_u32 v4, v4, v5
    s_mul_i32 {sTMP}, {sW}, 4224
    v_add_u32 v4, {sTMP}, v4
    v_lshrrev_b32 v5, 5, v0
    v_add_u32 v5, v5, v0
    v_lshlrev_b32 v5, 4, v5
    v_lshrrev_b32 v6, 2, v0
    v_lshlrev_b32 v6, 13, v6
    v_and_b32 v7, 3, v0
    v_lshlrev_b32 v7, 4, v7
    v_or_b32 v6, v6, v7
    v_mov_b32 v64, {sT[0]}
    v_mov_b32 v65, {sT[1]}
    v_mov_b32 v66, {sT[2]}
    v_mov_b32 v67, {sT[3]}
    """) if False else None
    e.wait_vm(("L", 63))
    stamp("vdone")
    pv_block(3)
    e(f"""
    v_and_b32 v4, 15, v1
    v_mul_u32_u24 v4, 528, v4
    v_lshrrev_b32 v5, 4, v1
    v_lshlrev_b32 v5, 7, v5
    v_add_u32 v4, v4, v5
    s_mul_i32 {sTMP}, {sW}, 4224
    v_add_u32 v4, {sTMP}, v4
    s_mov_b32 exec_lo, 0x00ff00ff
    s_mov_b32 exec_hi, 0x00ff00ff
    """)
    for i in range(8): e(f"ds_write_b128 v4, {vr(8+4*i,4)} offset:{ORED+16*i}")
    e(f"""
    s_mov_b64 exec, -1
    v_lshrrev_b32 v5, 5, v0
    v_add_u32 v5, v5, v0
    v_lshlrev_b32 v5, 4, v5
    v_lshrrev_b32 v6, 2, v0
    v_lshlrev_b32 v6, 13, v6
    v_and_b32 v7, 3, v0
    v_lshlrev_b32 v7, 4, v7
    v_or_b32 v6, v6, v7
    v_mov_b32 v64, {sT[0]}
    v_mov_b32 v65, {sT[1]}
    v_mov_b32 v66, {sT[2]}
    v_mov_b32 v67, {sT[3]}
    s_waitcnt lgkmcnt(0)
    s_barrier
    s_cmp_gt_u32 {sW}, 4
    s_cbranch_scc1 L_pub1_done
    s_cmp_eq_u32 {sW}, 4
    s_cbranch_scc1 L_pub1_ml
    """)
    e.optional += 1
    for wv in range(8): e(f"ds_read_b128 {vr(8+4*wv,4)}, v5 offset:{ORED+4224*wv}")
    e("s_waitcnt lgkmcnt(4)")
    for a, b in ((8, 12), (16, 20)):
        e(f"v_pk_add_f32 {vr(a,2)}, {vr(a,2)}, {vr(b,2)}\nv_pk_add_f32 {vr(a+2,2)}, {vr(a+2,2)}, {vr(b+2,2)}")
    e(f"v_pk_add_f32 v[8:9], v[8:9], v[16:17]\nv_pk_add_f32 v[10:11], v[10:11], v[18:19]")
    e("s_waitcnt lgkmcnt(0)")
    for a, b in ((24, 28), (32, 36), (24, 32), (8, 24)):
        e(f"v_pk_add_f32 {vr(a,2)}, {vr(a,2)}, {vr(b,2)}\nv_pk_add_f32 {vr(a+2,2)}, {vr(a+2,2)}, {vr(b+2,2)}")
    for k in range(4): e(f"v_and_or_b32 v{8+k}, v{8+k}, {sMASK}, v{64+k}")
    e(f"buffer_store_dwordx4 v[8:11], v6, {WS_SRD}, {sP1} offen sc1")
    e("s_branch L_pub1_done")
    e("L_pub1_ml:")
    e(f"""
    v_lshrrev_b32 v5, 3, v1
    v_lshlrev_b32 v5, 5, v5
    ds_read_b128 v[8:11], v5 offset:{MX}
    ds_read_b128 v[12:15], v5 offset:{MX+16}
    ds_read_b128 v[16:19], v5 offset:{LS}
    ds_read_b128 v[20:23], v5 offset:{LS+16}
    v_lshlrev_b32 v6, 13, v1
    s_waitcnt lgkmcnt(0)
    v_max3_f32 v8, v8, v9, v10
    v_max3_f32 v12, v12, v13, v14
    v_max3_f32 v8, v8, v11, v15
    v_max_f32 v8, v8, v12
    v_pk_add_f32 v[16:17], v[16:17], v[18:19]
    v_pk_add_f32 v[20:21], v[20:21], v[22:23]
    v_pk_add_f32 v[16:17], v[16:17], v[20:21]
    v_add_f32 v9, v16, v17
    v_mov_b32 v10, {sE}
    v_mov_b32 v11, {sE}
    buffer_store_dwordx4 v[8:11], v6, {WS_SRD}, {sP1} offen offset:64 sc1
    """)
    e.optional -= 1
    e("L_pub1_done:")
    stamp("pub1")
    if stop_after == "pub1":
        add_retries(e); finish(); emit_retries(e); return wrap(e, label), stamp_names

    def wo_transpose():
        for q in range(4):
            d = 208 + 4 * q
            e(f"v_perm_b32 v{d}, v{196+q}, v{192+q}, {sPE}")
            e(f"v_perm_b32 v{d+1}, v{204+q}, v{200+q}, {sPE}")
            e(f"v_perm_b32 v{d+2}, v{196+q}, v{192+q}, {sPO}")
            e(f"v_perm_b32 v{d+3}, v{204+q}, v{200+q}, {sPO}")
    def masks():
        e("v_and_b32 v76, 7, v1")
        for i in range(8):
            e(f"v_cmp_eq_u32 vcc, {i}, v76\nv_cndmask_b32 v{68+i}, 0, -1, vcc")
    e(f"s_cmp_gt_u32 {sW}, 1\ns_cbranch_scc1 L_hop1_other")
    e.optional += 1
    e(f"""
    v_lshrrev_b32 v4, 1, v1
    v_lshlrev_b32 v4, 7, v4
    v_and_b32 v5, 1, v1
    v_lshlrev_b32 v5, 5, v5
    v_or_b32 v5, v4, v5
    s_mov_b32 {sCNT}, 0
L_h1_poll:
    buffer_load_dwordx4 v[8:11], v5, {WS_SRD}, {sC1} offen sc1
    buffer_load_dwordx4 v[12:15], v5, {WS_SRD}, {sC1} offen offset:16 sc1
    buffer_load_dwordx4 v[16:19], v4, {WS_SRD}, {sC1} offen offset:64 sc1
    s_waitcnt vmcnt(0)
    """)
    for k in range(8): e(f"v_xor_b32 v{8+k}, {sT[k%4]}, v{8+k}")
    e(f"""
    v_or3_b32 v20, v8, v9, v10
    v_or3_b32 v21, v11, v12, v13
    v_or3_b32 v20, v20, v14, v15
    v_xor_b32 v22, {sE}, v18
    v_or_b32 v20, v20, v21
    v_and_b32 v20, 0x3ff, v20
    v_or_b32 v20, v20, v22
    v_cmp_ne_u32 vcc, 0, v20
    s_cbranch_vccz L_h1_ok
    s_add_u32 {sCNT}, {sCNT}, 1
    s_cmp_lt_u32 {sCNT}, {SPIN_MAX}
    """)
    e.flush()
    e("s_cbranch_scc1 L_h1_poll")
    e("L_h1_ok:")
    stamp("h1got")
    e("v_mov_b32 v20, v16")
    for n in (8, 4, 2):
        e(f"v_max_f32_dpp v20, v20, v20 row_ror:{n} row_mask:0xf bank_mask:0xf")
    e(f"""
    v_mov_b32 v21, v20
    v_permlane16_swap_b32 v20, v21
    v_max_f32 v20, v20, v21
    v_mov_b32 v21, v20
    v_permlane32_swap_b32 v20, v21
    v_max_f32 v20, v20, v21
    v_sub_f32 v20, v16, v20
    v_mul_f32 v20, {sLOG}, v20
    v_exp_f32 v20, v20
    v_mul_f32 v17, v17, v20
    """)
    for k in range(0, 8, 2):
        e(f"v_pk_mul_f32 {vr(8+k,2)}, {vr(8+k,2)}, v[20:21] op_sel_hi:[1,0]")
    e("v_mov_b32 v18, v17")
    for r in range(4): e(f"v_permlane32_swap_b32 v{8+r}, v{12+r}")
    e("v_permlane32_swap_b32 v17, v18")
    for r in range(4): e(f"v_add_f32 v{8+r}, v{8+r}, v{12+r}")
    e("v_add_f32 v17, v17, v18\nv_mov_b32 v18, v17")
    e("v_permlane16_swap_b32 v8, v10\nv_permlane16_swap_b32 v9, v11\nv_permlane16_swap_b32 v17, v18")
    e("v_add_f32 v8, v8, v10\nv_add_f32 v9, v9, v11\nv_add_f32 v17, v17, v18")
    for n in (8, 4, 2):
        for r in (8, 9, 17): e(f"v_add_f32_dpp v{r}, v{r}, v{r} row_ror:{n} row_mask:0xf bank_mask:0xf")
    e(f"""
    v_rcp_f32 v17, v17
    v_and_b32 v4, 16, v1
    v_and_b32 v5, 1, v1
    v_lshlrev_b32 v5, 2, v5
    v_lshrrev_b32 v6, 5, v1
    v_lshlrev_b32 v6, 1, v6
    v_or3_b32 v4, v4, v5, v6
    s_lshl_b32 {sTMP}, {sW}, 5
    v_add_u32 v4, {sTMP}, v4
    v_mul_f32 v8, v8, v17
    v_mul_f32 v9, v9, v17
    v_cvt_pk_bf16_f32 v8, v8, v9
    s_mov_b32 exec_lo, 0x00030003
    s_mov_b32 exec_hi, 0x00030003
    ds_write_b16 v4, v8 offset:{OL}
    ds_write_b16_d16_hi v4, v8 offset:{OL+8}
    s_mov_b64 exec, -1
    """)
    e.optional -= 1
    e("L_hop1_other:")
    e.wait_vm("wo")
    wo_transpose()
    masks()
    e(f"""
    v_bfe_u32 v4, v1, 3, 1
    v_lshlrev_b32 v4, 5, v4
    v_lshrrev_b32 v5, 4, v1
    v_lshlrev_b32 v5, 3, v5
    v_add_u32 v4, v4, v5
    v_lshrrev_b32 v5, 5, v1
    v_lshlrev_b32 v5, 20, v5
    v_and_b32 v6, 15, v1
    v_lshlrev_b32 v6, 13, v6
    v_and_b32 v7, 16, v1
    v_or3_b32 v5, v5, v6, v7
    s_waitcnt lgkmcnt(0)
    s_barrier
    ds_read_b64 v[8:9], v4 offset:{OL}
    s_waitcnt lgkmcnt(0)
    """)
    for q in range(4):
        d = 12 + 4 * q
        e(f"v_and_b32 v{d}, v8, v{68+2*q}\nv_and_b32 v{d+1}, v9, v{68+2*q}\nv_and_b32 v{d+2}, v8, v{69+2*q}\nv_and_b32 v{d+3}, v9, v{69+2*q}")
    for q in range(4):
        c = "0" if q == 0 else "v[28:31]"
        e(f"v_mfma_f32_16x16x32_bf16 v[28:31], {vr(12+4*q,4)}, {vr(208+4*q,4)}, {c}")
    for k in range(4): e(f"v_and_or_b32 v{28+k}, v{28+k}, {sMASK}, v{64+k}")
    e(f"buffer_store_dwordx4 v[28:31], v5, {WS_SRD}, {sP2} offen sc1", tag="pub2")
    stamp("pub2")
    if stop_after == "pub2":
        add_retries(e); finish(); emit_retries(e); return wrap(e, label), stamp_names

    e(f"""
    v_lshlrev_b32 v4, 4, v0
    s_mov_b32 {sCNT}, 0
L_h2_poll:
    buffer_load_dwordx4 v[8:11], v4, {WS_SRD}, {sC2} offen sc1
    s_waitcnt vmcnt(0)
    """)
    e.vm_done = len(e.vm)
    for k in range(4): e(f"v_xor_b32 v{8+k}, {sT[k]}, v{8+k}")
    e(f"""
    v_or3_b32 v12, v8, v9, v10
    v_or_b32 v12, v12, v11
    v_and_b32 v12, 0x3ff, v12
    v_cmp_ne_u32 vcc, 0, v12
    s_cbranch_vccz L_h2_ok
    s_add_u32 {sCNT}, {sCNT}, 1
    s_cmp_lt_u32 {sCNT}, {SPIN_MAX}
    """)
    e.flush()
    e("s_cbranch_scc1 L_h2_poll")
    e("L_h2_ok:")
    stamp("h2got")
    e(f"""
    v_permlane32_swap_b32 v8, v9
    v_permlane32_swap_b32 v10, v11
    v_add_f32 v8, v8, v9
    v_add_f32 v10, v10, v11
    v_permlane16_swap_b32 v8, v10
    v_add_f32 v8, v8, v10
    """)
    e(f"""
    v_and_b32 v4, 1, v1
    v_lshlrev_b32 v4, 7, v4
    v_and_b32 v5, 16, v1
    v_lshlrev_b32 v5, 2, v5
    v_and_b32 v6, 32, v1
    v_or3_b32 v4, v4, v5, v6
    s_lshl_b32 {sTMP}, {sW}, 2
    v_add_u32 v4, {sTMP}, v4
    """)
    for n in (8, 4, 2): e(f"v_add_f32_dpp v8, v8, v8 row_ror:{n} row_mask:0xf bank_mask:0xf")
    e(f"""
    s_mov_b32 exec_lo, 0x00030003
    s_mov_b32 exec_hi, 0x00030003
    ds_write_b32 v4, v8 offset:{HRED}
    s_mov_b64 exec, -1
    v_and_b32 v5, 7, v1
    v_lshlrev_b32 v5, 5, v5
    s_waitcnt lgkmcnt(0)
    s_barrier
    s_cmp_lg_u32 {sW}, 0
    s_cbranch_scc1 L_hop3_other
    """)
    e.optional += 1
    e(f"""
    ds_read_b128 v[8:11], v5 offset:{HRED}
    ds_read_b128 v[12:15], v5 offset:{HRED+16}
    s_lshl_b32 {sTMP}, s2, 4
    s_add_u32 {sTMP}, {sTMP}, {ST}
    s_lshr_b32 {sTMP2}, s2, 7
    s_lshl_b32 {sTMP2}, {sTMP2}, 11
    s_add_u32 {sTMP2}, {sTMP2}, {ST}
    v_mov_b32 v6, 0
    v_lshlrev_b32 v7, 5, v1
    s_waitcnt lgkmcnt(0)
    v_pk_add_f32 v[8:9], v[8:9], v[10:11]
    v_pk_add_f32 v[12:13], v[12:13], v[14:15]
    v_pk_add_f32 v[8:9], v[8:9], v[12:13]
    v_add_f32 v8, v8, v9
    """)
    rnd1(8, 9)
    e("v_add_f32 v254, v252, v8")
    rnd1(254, 9)
    e(f"""
    v_mov_b32 v8, v254
    v_mul_f32 v9, v254, v254
    """)
    for m in ("quad_perm:[1,0,3,2]", "quad_perm:[2,3,0,1]", "row_half_mirror"):
        e(f"v_add_f32_dpp v8, v8, v8 {m} row_mask:0xf bank_mask:0xf\nv_add_f32_dpp v9, v9, v9 {m} row_mask:0xf bank_mask:0xf")
    e(f"""
    v_mov_b32 v10, {sE}
    v_mov_b32 v11, {sE}
    s_mov_b64 exec, 1
    buffer_store_dwordx4 v[8:11], v6, {WS_SRD}, {sTMP} offen sc1
    s_mov_b64 exec, -1
    s_mov_b32 {sCNT}, 0
    """)
    stamp("pub3")
    e(f"""
L_h3_poll:
    buffer_load_dwordx4 v[12:15], v7, {WS_SRD}, {sTMP2} offen sc1
    buffer_load_dwordx4 v[16:19], v7, {WS_SRD}, {sTMP2} offen offset:16 sc1
    s_waitcnt vmcnt(0)
    v_xor_b32 v20, {sE}, v14
    v_xor_b32 v21, {sE}, v18
    v_or_b32 v20, v20, v21
    v_cmp_ne_u32 vcc, 0, v20
    s_cbranch_vccz L_h3_ok
    s_add_u32 {sCNT}, {sCNT}, 1
    s_cmp_lt_u32 {sCNT}, {SPIN_MAX}
    """)
    e.flush()
    e("s_cbranch_scc1 L_h3_poll")
    e("L_h3_ok:")
    stamp("h3got")
    e(f"""
    v_add_f32 v12, v12, v16
    v_add_f32 v13, v13, v17
    """)
    for n in (8, 4, 2, 1):
        e(f"v_add_f32_dpp v12, v12, v12 row_ror:{n} row_mask:0xf bank_mask:0xf\nv_add_f32_dpp v13, v13, v13 row_ror:{n} row_mask:0xf bank_mask:0xf")
    e(f"""
    v_mov_b32 v14, v12
    v_mov_b32 v15, v13
    v_permlane16_swap_b32 v12, v14
    v_permlane16_swap_b32 v13, v15
    v_add_f32 v12, v12, v14
    v_add_f32 v13, v13, v15
    v_mov_b32 v14, v12
    v_mov_b32 v15, v13
    v_permlane32_swap_b32 v12, v14
    v_permlane32_swap_b32 v13, v15
    v_add_f32 v12, v12, v14
    v_add_f32 v13, v13, v15
    v_mul_f32 v12, 0x3a800000, v12
    v_mul_f32 v13, 0x3a800000, v13
    v_fma_f32 v13, -v12, v12, v13
    v_mov_b32 v14, v12
    v_mov_b32 v15, v13
    """)
    rnd_pair(14, 15, 16)
    e("v_add_f32 v15, 0x3727c5ac, v15")
    rnd1(15, 16)
    e("v_sqrt_f32 v15, v15")
    rnd1(15, 16)
    e(f"""
    v_rcp_f32 v17, v15
    v_sub_f32 v18, v254, v14
    v_sub_f32 v12, v12, v14
    """)
    rnd1(18, 16)
    e(f"""
    v_mul_f32 v19, v18, v17
    v_mul_f32 v12, v12, v17
    v_mul_f32 v13, v13, v17
    v_fma_f32 v18, -v19, v15, v18
    v_mul_f32 v13, v13, v17
    v_fma_f32 v18, v18, v17, v19
    """)
    rnd_pair(12, 13, 16)
    rnd1(18, 16)
    e("v_add_f32 v13, 0x3727c5ac, v13")
    rnd1(13, 16)
    e("v_sqrt_f32 v13, v13\nv_sub_f32 v18, v18, v12")
    rnd_pair(13, 18, 16)
    e(f"""
    v_rcp_f32 v17, v13
    v_lshlrev_b32 v4, 2, v1
    v_mul_f32 v19, v18, v17
    v_fma_f32 v18, -v19, v13, v18
    v_fma_f32 v18, v18, v17, v19
    """)
    rnd1(18, 16)
    e(f"""
    s_mov_b64 exec, 0xff
    ds_write_b32 v4, v18 offset:{TL}
    s_mov_b64 exec, -1
    """)
    e.optional -= 1
    e("L_hop3_other:")
    e(f"""
    v_mov_b32 v4, 0
    v_mov_b32 v30, {hex(f2u(K1))}
    v_mov_b32 v31, {hex(f2u(K0))}
    s_waitcnt lgkmcnt(0)
    s_barrier
    ds_read_b128 v[32:35], v4 offset:{TL}
    ds_read_b128 v[36:39], v4 offset:{TL+16}
    s_waitcnt lgkmcnt(0)
    """)
    stamp("tgot")
    def pr(x): return f"v[{x}:{x+1}]"
    Wp = [224 + 2 * f for f in range(7)]; Bp = [238 + 2 * f for f in range(7)]
    stages = []
    for dp in range(4):
        t = pr(32 + 2 * dp)
        U = [64 + 2 * i for i in range(7)]
        UW = [80 + (dp % 2) * 32 + 2 * i for i in range(7)]; Z = [96 + (dp % 2) * 32 + 2 * i for i in range(7)]
        acc = 40 + 2 * dp
        pre = []; tr1 = []; mid = []; tr2 = []; post = []
        for f in range(7): pre.append(f"v_pk_fma_f32 {pr(U[f])}, {pr(Wp[f])}, {t}, {pr(Bp[f])} op_sel_hi:[0,1,0]")
        for f in range(7): pre.append(f"v_pk_mul_f32 {pr(Z[f])}, {pr(U[f])}, {pr(U[f])}")
        for f in range(7): pre.append(f"v_pk_fma_f32 {pr(UW[f])}, {pr(Wp[f])}, {t}, {pr(Bp[f])} op_sel:[1,0,1] op_sel_hi:[1,1,1]")
        for f in range(7): pre.append(f"v_pk_fma_f32 {pr(Z[f])}, {pr(Z[f])}, v[30:31], v[30:31] op_sel:[0,0,1] op_sel_hi:[1,0,1]")
        for f in range(7): pre.append(f"v_pk_mul_f32 {pr(Z[f])}, {pr(Z[f])}, {pr(U[f])}")
        for f in range(7):
            tr1.append(f"v_exp_f32 v{Z[f]}, v{Z[f]}"); tr1.append(f"v_exp_f32 v{Z[f]+1}, v{Z[f]+1}")
        for f in range(7): mid.append(f"v_pk_add_f32 {pr(Z[f])}, {pr(Z[f])}, 1.0 op_sel_hi:[1,0]")
        for f in range(7):
            tr2.append(f"v_rcp_f32 v{Z[f]}, v{Z[f]}"); tr2.append(f"v_rcp_f32 v{Z[f]+1}, v{Z[f]+1}")
        for f in range(7):
            if f == 0: post.append(f"v_pk_mul_f32 {pr(acc)}, {pr(UW[f])}, {pr(Z[f])}")
            else: post.append(f"v_pk_fma_f32 {pr(acc)}, {pr(UW[f])}, {pr(Z[f])}, {pr(acc)}")
        stages.append((pre, tr1, mid, tr2, post))
    def merge(x, y):
        out = []; i = j = 0
        while i < len(x) or j < len(y):
            if j >= len(y) or (i < len(x) and i * len(y) <= j * len(x)): out.append(x[i]); i += 1
            else: out.append(y[j]); j += 1
        return out
    l = list(stages[0][0])
    for dp in range(4):
        pre, tr1, mid, tr2, post = stages[dp]
        nx = stages[dp + 1][0] if dp < 3 else []
        l += merge(tr1, nx[:18]); l += mid; l += merge(tr2, nx[18:]); l += post
    for s in l: e(s)
    stamp("gelu")
    for r in range(4): e(f"v_permlane32_swap_b32 v{40+r}, v{44+r}")
    for r in range(4): e(f"v_add_f32 v{40+r}, v{40+r}, v{44+r}")
    e("v_permlane16_swap_b32 v40, v42\nv_permlane16_swap_b32 v41, v43")
    e("v_add_f32 v40, v40, v42\nv_add_f32 v41, v41, v43")
    e(f"""
    v_and_b32 v4, 32, v1
    v_lshlrev_b32 v4, 2, v4
    v_and_b32 v5, 16, v1
    v_lshlrev_b32 v5, 2, v5
    s_lshl_b32 {sTMP}, {sW}, 2
    v_add3_u32 v4, v4, v5, {sTMP}
    """)
    for n in (8, 4, 2, 1):
        e(f"v_add_f32_dpp v40, v40, v40 row_ror:{n} row_mask:0xf bank_mask:0xf\nv_add_f32_dpp v41, v41, v41 row_ror:{n} row_mask:0xf bank_mask:0xf")
    e(f"""
    s_mov_b32 exec_lo, 0x00010001
    s_mov_b32 exec_hi, 0x00010001
    ds_write_b32 v4, v40 offset:{GRED}
    ds_write_b32 v4, v41 offset:{GRED+32}
    s_mov_b64 exec, -1
    v_and_b32 v5, 7, v1
    v_lshlrev_b32 v6, 1, v5
    v_lshlrev_b32 v5, 5, v5
    s_waitcnt lgkmcnt(0)
    s_barrier
    s_cmp_lg_u32 {sW}, 0
    s_cbranch_scc1 L_fin
    """)
    e.optional += 1
    e(f"""
    ds_read_b128 v[8:11], v5 offset:{GRED}
    ds_read_b128 v[12:15], v5 offset:{GRED+16}
    s_lshl_b32 {sTMP}, s2, 4
    s_waitcnt lgkmcnt(0)
    v_pk_add_f32 v[8:9], v[8:9], v[10:11]
    v_pk_add_f32 v[12:13], v[12:13], v[14:15]
    v_pk_add_f32 v[8:9], v[8:9], v[12:13]
    v_add_f32 v8, v8, v9
    """)
    rnd1(8, 9)
    e("v_add_f32 v8, v8, v253")
    rnd1(8, 9)
    e(f"""
    v_add_f32 v8, v8, v254
    v_cvt_pk_bf16_f32 v8, v8, v8
    s_mov_b64 exec, 0xff
    buffer_store_short v8, v6, {OUT_SRD}, {sTMP} offen
    s_mov_b64 exec, -1
    s_cmp_lg_u32 s2, 0
    s_cbranch_scc1 L_fin
    v_mov_b32 v4, {EPOCH}
    v_mov_b32 v5, {sE}
    s_mov_b64 exec, 1
    buffer_store_dword v5, v4, {WS_SRD}, 0 offen sc1
    s_mov_b64 exec, -1
    """)
    e.optional -= 1
    e("L_fin:")
    stamp("end")
    add_retries(e); finish(); emit_retries(e)
    return wrap(e, label), stamp_names

def add_retries(e): pass
def emit_retries(e):
    e.hist = []
    e(f"""
L_qretry:
    s_mov_b32 {sCNT}, 0
L_qr_loop:
    s_sleep 2
    buffer_load_dwordx2 v[6:7], v4, {WS_SRD}, {sQG} offen sc1
    s_waitcnt vmcnt(0)
    v_cmp_ne_u32 vcc, {sE}, v7
    s_cbranch_vccz L_qr_out
    s_add_u32 {sCNT}, {sCNT}, 1
    s_cmp_lt_u32 {sCNT}, {SPIN_MAX}
    s_cbranch_scc1 L_qr_loop
L_qr_out:
    s_nop 4
    s_branch L_qok
    """)
def wrap(e, label):
    e("L_end:\ns_endpgm")
    return file_text([f"; @launch grid=(256,1,1) block=(512,1,1) lds={LDS_BYTES}"], [(label, e.text(), kernel_desc(label, vgpr=256, sgpr=102))])

if __name__ == "__main__":
    import argparse
    ap = argparse.ArgumentParser()
    ap.add_argument("-o", default="fused.s"); ap.add_argument("--stop"); ap.add_argument("--stamps", action="store_true")
    ap.add_argument("-D", type=int, default=10); ap.add_argument("--NQ", type=int, default=20)
    a = ap.parse_args()
    t, names = gen(D=a.D, NQ=a.NQ, stop_after=a.stop, stamps=a.stamps)
    open(a.o, "w").write(t)
    print("written", a.o, len(t), "bytes; stamps:", names)
```
